```python
import torch

def _softmax(x, axis=-1):
    return torch.softmax(x, dim=axis)
def _gelu(x):
    return torch.nn.functional.gelu(x, approximate="tanh")
def _silu(x):
    return torch.nn.functional.silu(x)
def _sigmoid(x):
    return torch.sigmoid(x)
def _layernorm(x, axis=-1, eps=1e-5):
    m = x.mean(dim=axis, keepdim=True)
    v = x.var(dim=axis, keepdim=True, unbiased=False)
    return (x - m) / torch.sqrt(v + eps)
def _scatter_add(tgt, idx, src, axis=0):
    return tgt.clone().index_add_(axis, idx, src)
def _segment_sum(src, seg, n):
    out = torch.zeros((n,) + src.shape[1:], dtype=src.dtype)
    return out.index_add_(0, seg, src)
def _pad(x, pw):
    flat = tuple(v for pair in reversed(pw) for v in pair)
    return torch.nn.functional.pad(x, flat)

kernel_name = 'concat_heads__gqa_block_cached__mha_block_cached__near_ridge'

def setup_inputs():

    _w = (lambda a: (lambda t: t.to(torch.bfloat16) if t.is_floating_point() else t)(torch.as_tensor(a)))
    def _A_setup():
        B, Sq, D = 32, 96, 576
        Hq, Hkv, Sk, Dh = 32, 16, 512, 128
        assert Hq % Hkv == 0, (Hq, Hkv)
        return {
            "x": _w((lambda *s: torch.randn(*s, dtype=torch.bfloat16) * 0.8)(B, Sq, D)),
            "k_cache": _w((lambda *s: torch.randn(*s, dtype=torch.bfloat16) * 0.8)(B, Hkv, Sk, Dh)),
            "v_cache": _w((lambda *s: torch.randn(*s, dtype=torch.bfloat16) * 0.05)(B, Hkv, Sk, Dh)),
            "wq": _w((lambda *s: torch.randn(*s, dtype=torch.bfloat16) * 0.8)(D, Hq * Dh) * (D ** -0.5)),
            "wo": _w((lambda *s: torch.randn(*s, dtype=torch.bfloat16) * 0.05)(Hq * Dh, D) * ((Hq * Dh) ** -0.5)),
        }
    _A_in = _A_setup()

    def _B_setup():
        B, Sq, D = 32, 96, 576
        H, Sk, Dh = 32, 512, 128
        return {
            "x": _w((lambda *s: torch.randn(*s, dtype=torch.bfloat16) * 0.8)(B, Sq, D)),
            "k_cache": _w((lambda *s: torch.randn(*s, dtype=torch.bfloat16) * 0.8)(B, H, Sk, Dh)),
            "v_cache": _w((lambda *s: torch.randn(*s, dtype=torch.bfloat16) * 0.05)(B, H, Sk, Dh)),
            "wq": _w((lambda *s: torch.randn(*s, dtype=torch.bfloat16) * 0.8)(D, H * Dh) * (D ** -0.5)),
            "wo": _w((lambda *s: torch.randn(*s, dtype=torch.bfloat16) * 0.05)(H * Dh, D) * ((H * Dh) ** -0.5)),
        }
    _B_in = _B_setup()

    return {
        "A_x": _A_in["x"],
        "A_k_cache": _A_in["k_cache"],
        "A_v_cache": _A_in["v_cache"],
        "A_wq": _A_in["wq"],
        "A_wo": _A_in["wo"],
        "B_x": _B_in["x"],
        "B_k_cache": _B_in["k_cache"],
        "B_v_cache": _B_in["v_cache"],
        "B_wq": _B_in["wq"],
        "B_wo": _B_in["wo"],
    }

def reference(A_x, A_k_cache, A_v_cache, A_wq, A_wo, B_x, B_k_cache, B_v_cache, B_wq, B_wo):
    def _A_ref(x, k_cache, v_cache, wq, wo):
        B, Sq, D = x.shape
        Hq, Dh = 32, 128
        Hkv = k_cache.shape[1]
        rep = Hq // Hkv
        q = (lambda x, *d: x.permute(*d))((x @ wq).reshape(B, Sq, Hq, Dh), 0, 2, 1, 3)
        k = (lambda x, n, axis: torch.repeat_interleave(x, n, dim=axis))(k_cache, rep, axis=1)
        v = (lambda x, n, axis: torch.repeat_interleave(x, n, dim=axis))(v_cache, rep, axis=1)
        scores = torch.einsum("bhqd,bhkd->bhqk", q, k) * (Dh ** -0.5)
        p = _softmax(scores, axis=-1)
        o = torch.einsum("bhqk,bhkd->bhqd", p, v)
        return (lambda x, *d: x.permute(*d))(o, 0, 2, 1, 3).reshape(B, Sq, Hq * Dh) @ wo

    def _B_ref(x, k_cache, v_cache, wq, wo):
        B, Sq, D = x.shape
        H, Dh = 32, 128
        q = (lambda x, *d: x.permute(*d))((x @ wq).reshape(B, Sq, H, Dh), 0, 2, 1, 3)
        scores = torch.einsum("bhqd,bhkd->bhqk", q, k_cache) * (Dh ** -0.5)
        p = _softmax(scores, axis=-1)
        o = torch.einsum("bhqk,bhkd->bhqd", p, v_cache)
        return (lambda x, *d: x.permute(*d))(o, 0, 2, 1, 3).reshape(B, Sq, H * Dh) @ wo

    a = _A_ref(A_x, A_k_cache, A_v_cache, A_wq, A_wo)
    b = _B_ref(B_x, B_k_cache, B_v_cache, B_wq, B_wo)
    return torch.concatenate([a, b], axis=-1)
```

```python
import re


def R(kind, base, n=1):
    return [f"{kind}{base + i}" for i in range(n)]


def rs(kind, base, n):
    return f"{kind}{base}" if n == 1 else f"{kind}[{base}:{base + n - 1}]"


class Op:
    __slots__ = ("text", "kind", "reads", "writes", "lo", "hi", "soft", "tag", "seq", "preds", "succs",
                 "placed", "need_tags", "need_ds", "lead", "trans", "name", "gap", "nvm", "nlg", "srcc",
                 "comment", "prio_pull", "ldsr", "ldsw")

    def __init__(self, text, kind, reads=(), writes=(), lo=None, hi=None, tag=None, lead=None,
                 trans=False, name=None, srcc=()):
        self.text = text
        self.kind = kind
        self.reads = list(reads)
        self.writes = list(writes)
        self.lo = lo
        self.hi = hi
        self.soft = None
        self.tag = tag
        self.seq = None
        self.preds = []
        self.succs = []
        self.placed = False
        self.need_tags = []
        self.need_ds = []
        self.lead = lead
        self.trans = trans
        self.name = name
        self.gap = None
        self.nvm = None
        self.nlg = None
        self.srcc = list(srcc)
        self.comment = None
        self.prio_pull = 0
        self.ldsr = None
        self.ldsw = None

    def __repr__(self):
        return f"<{self.kind} {self.text}>"


VALU = ("V4", "V8")
VMEM = ("DMA", "LD", "ST")
DSK = ("DS", "DSW")


def mfma(d, a, b, c):
    dr = R(d[0], d[1], 4)
    cs = "0" if c is None else rs(c[0], c[1], 4)
    cr = [] if c is None else R(c[0], c[1], 4)
    return Op(f"v_mfma_f32_16x16x32_bf16 {rs(d[0], d[1], 4)}, {rs(a[0], a[1], 4)}, {rs(b[0], b[1], 4)}, {cs}",
              "M", R(a[0], a[1], 4) + R(b[0], b[1], 4) + cr, dr, srcc=cr)


def hazard_dist(p, c):
    need = 0
    pw = set(p.writes)
    if p.kind == "M":
        if c.kind == "M":
            if pw & set(c.srcc):
                need = max(need, 0 if set(c.srcc) == pw else 6)
            ab = set(c.reads[:8])
            if pw & ab:
                need = max(need, 8)
            if (pw & set(c.writes)) and set(c.srcc) != pw:
                need = max(need, 6)
        elif c.kind in VALU:
            if pw & (set(c.reads) | set(c.writes)):
                need = max(need, 8)
            if set(p.srcc) & set(c.writes):
                need = max(need, 3)
        elif c.kind in DSK or c.kind in VMEM:
            if pw & (set(c.reads) | set(c.writes)):
                need = max(need, 8)
            if set(p.srcc) & set(c.writes):
                need = max(need, 3)
    elif p.kind in VALU:
        vw = {r for r in pw if r[0] in "va" and r != "vcc"}
        sw = pw - vw
        if c.kind == "M" and vw & set(c.reads):
            need = max(need, 2)
        if c.kind in VALU:
            if p.trans and not c.trans and vw & set(c.reads):
                need = max(need, 1)
            if "permlane" in c.text and vw & set(c.reads):
                need = max(need, 2)
            if "readfirstlane" in c.text and vw & set(c.reads):
                need = max(need, 1)
            if sw & set(c.reads):
                need = max(need, 2)
        if c.kind in VMEM and sw & set(c.reads):
            need = max(need, 5)
        if c.kind in ("S", "BR") and sw & set(c.reads):
            need = max(need, 3)
        if "exec" in pw and c.kind == "M":
            need = max(need, 4)
    elif p.kind == "S":
        if "m0" in pw and c.kind == "DMA":
            need = max(need, 1)
    elif p.kind in ("ST",):
        if c.kind in VALU and "x4" in p.text and set(p.reads) & set(c.writes):
            need = max(need, 2)
        elif "x4" in p.text and set(p.reads) & set(c.writes):
            need = max(need, 1)
    return need


def states(op):
    if op.kind == "NOP":
        return int(op.text.split()[1]) + 1
    if op.kind == "LABEL":
        return 0
    return 1


MAXH = 9


class Region:
    def __init__(self, name, lead=8, verbose=False):
        self.name = name
        self.ops = []
        self.mf = []
        self.bars = {}
        self.lead = lead
        self.out = []
        self.verbose = verbose
        self.cost = 0
        self.stats = {}
        self.barcap = 0

    def pos(self):
        return len(self.mf) - 1

    def add(self, op):
        op.seq = len(self.ops)
        self.ops.append(op)
        if op.kind == "M":
            op.gap = len(self.mf)
            self.mf.append(op)
        return op

    def barrier(self, gap=None, tags=(), ds=(), name=None, text="s_barrier"):
        b = Op(text, "BAR", name=name)
        b.need_tags = list(tags)
        b.need_ds = list(ds)
        b.gap = self.pos() if gap is None else gap
        self.bars.setdefault(b.gap, []).append(b)
        return b

    def analyse(self):
        lastw = {}
        readers = {}
        for op in self.ops:
            preds = set()
            for r in op.reads:
                if r in lastw:
                    preds.add(lastw[r])
            for r in op.writes:
                if r in lastw:
                    preds.add(lastw[r])
                for x in readers.get(r, ()):
                    if x is not op:
                        preds.add(x)
            op.preds = list(preds)
            for p in preds:
                p.succs.append(op)
            for r in op.reads:
                readers.setdefault(r, []).append(op)
            for r in op.writes:
                lastw[r] = op
                readers[r] = []
        N = len(self.mf)
        INF = N - 1
        for op in reversed(self.ops):
            if op.kind == "M":
                continue
            hard = INF if op.hi is None else op.hi
            soft = hard
            if op.soft is not None:
                soft = min(soft, op.soft)
            for s in op.succs:
                if s.kind == "M":
                    k = s.gap
                    raw = set(op.writes) & set(s.reads)
                    if raw and op.kind == "DS":
                        ld = self.lead if op.lead is None else op.lead
                        hard = min(hard, max(k - 2, -1))
                        soft = min(soft, k - 1 - ld)
                    elif raw:
                        hard = min(hard, k - 2 if op.kind in VALU else k - 1)
                        soft = min(soft, k - 3)
                    else:
                        hard = min(hard, k - 1)
                        soft = min(soft, k - 2)
                else:
                    hard = min(hard, s.hi)
                    d = 0 if s.kind == "S" or op.kind == "S" else 1
                    soft = min(soft, s.soft - d)
            op.hi = hard
            op.soft = min(soft, hard)
        for op in self.ops:
            if op.kind == "M":
                continue
            lo = -1 if op.lo is None else op.lo
            for p in op.preds:
                if p.kind == "M":
                    lo = max(lo, p.gap)
                else:
                    lo = max(lo, p.lo)
            op.lo = lo
            if op.lo > op.hi:
                raise RuntimeError(f"{self.name}: empty window for {op} lo={op.lo} hi={op.hi}")

    def _dist_ok(self, op):
        d = 0
        for p in reversed(self.out):
            if d >= MAXH:
                break
            if hazard_dist(p, op) > d:
                return False
            d += states(p)
        return True

    def _pad(self, op):
        worst = 0
        d = 0
        for p in reversed(self.out):
            if d >= MAXH:
                break
            worst = max(worst, hazard_dist(p, op) - d)
            d += states(p)
        if worst > 0:
            self.out.append(Op(f"s_nop {worst - 1}", "NOP"))
            self.stats["nop"] = self.stats.get("nop", 0) + worst
            return worst
        return 0

    def _pending_ds(self, op):
        regs = set(op.reads) | set(op.writes)
        res = [d for d in self.dsq if d.kind == "DS" and (set(d.writes) & regs)]
        return res

    def _emit_wait(self, ds_ops, tags=()):
        w = Op("s_waitcnt", "WAIT")
        w.need_ds = list(ds_ops)
        w.need_tags = list(tags)
        self.out.append(w)
        if ds_ops:
            real = [d for d in ds_ops if d in self.dsq and d.name != "DUMMY"]
            last = max(self.dsq.index(d) for d in real) if real else -1
            if last >= 0:
                self.dsq = self.dsq[last + 1:]
            self.dsq = [d for d in self.dsq if d not in ds_ops]
        return w

    def _emit(self, op):
        pend = self._pending_ds(op)
        n = 0
        if pend:
            self._emit_wait(pend)
            n += 1
            self.stats["latewait"] = self.stats.get("latewait", 0) + 1
        n += self._pad(op)
        self.out.append(op)
        op.placed = True
        if op.kind in DSK:
            self.dsq.append(op)
        return n

    def schedule(self, prefix=None, cut=None, pending_ds=()):
        self.analyse()
        self.out = []
        self.dsq = list(pending_ds)
        self._dummies = list(pending_ds)
        fill = [op for op in self.ops if op.kind != "M"]
        ready_pool = sorted(fill, key=lambda o: (o.lo, o.seq))
        active = []
        idx = 0
        N = len(self.mf)
        prev_vv = False
        start = -1
        if prefix is not None:
            bytext = {}
            for op in self.ops:
                bytext.setdefault((op.text, op.name), []).append(op)
            for p in prefix:
                if p.kind in ("WAIT",):
                    ds = []
                    for d in p.need_ds:
                        if d.name == "DUMMY":
                            ds.append([x for x in self._dummies if x.writes == d.writes][0])
                        else:
                            ds.append(self._map[id(d)])
                    self._emit_wait(ds, p.need_tags)
                    continue
                if p.kind == "NOP":
                    self.out.append(Op(p.text, "NOP"))
                    continue
                if p.kind == "BAR":
                    b = [x for x in self.bars[p.gap] if x.name == p.name][0]
                    b.placed = True
                    self.out.append(b)
                    continue
                q = bytext[(p.text, p.name)].pop(0)
                if not hasattr(self, "_map"):
                    self._map = {}
                self._map[id(p)] = q
                q.placed = True
                if q.kind != "M":
                    q.gap = p.gap
                self.out.append(q)
                if q.kind in DSK:
                    self.dsq.append(q)
            start = cut
        for g in range(start, N):
            if g >= 0 and not self.mf[g].placed:
                self._emit(self.mf[g])
            while idx < len(ready_pool) and ready_pool[idx].lo <= g:
                if not ready_pool[idx].placed:
                    active.append(ready_pool[idx])
                idx += 1
            nsc = 0
            vec = 0
            nxt = self.mf[g + 1] if g + 1 < N else None
            want = self._pending_ds(nxt) if nxt is not None else []
            bars = [b for b in self.bars.get(g, []) if not b.placed]
            for b in bars:
                ds = [d for d in b.need_ds]
                for d in ds:
                    if not d.placed:
                        raise RuntimeError(f"{self.name}: barrier {b.name} at gap {g} needs unplaced {d} hi={d.hi}")
                ds = [d for d in ds if d in self.dsq] + want
                want = []
                if ds or b.need_tags:
                    self._emit_wait(ds, b.need_tags)
                    nsc += 1
                self.out.append(b)
                b.placed = True
                nsc += 1
            if want:
                self._emit_wait(want)
                nsc += 1

            def ready(o):
                return all(p.placed for p in o.preds) and self._dist_ok(o) and not self._pending_ds(o)

            def place(o):
                o.gap = g
                active.remove(o)
                self._emit(o)

            def try_scalars(maxn):
                nonlocal nsc
                c = sorted([o for o in active if o.kind == "S"], key=lambda o: (o.soft, o.seq))
                for o in c:
                    if nsc >= maxn:
                        break
                    if all(p.placed for p in o.preds) and self._dist_ok(o):
                        place(o)
                        nsc += 1

            try_scalars(1)
            cap = min(2, 3 - nsc)
            if bars:
                cap = self.barcap
            cand = sorted([o for o in active if o.kind not in ("S",)], key=lambda o: (o.soft, o.seq))
            rdy = [o for o in cand if ready(o)]
            prim = [o for o in rdy if o.kind != "V4"]
            sec = [o for o in rdy if o.kind == "V4"]
            chosen = []
            dsr = [o for o in prim if o.kind == "DS"]
            excl = [o for o in prim if o.kind != "DS"]
            if cap >= 1:
                big = 10 ** 9
                u_ds = dsr[0].soft if dsr else big
                u_ex = excl[0].soft if excl else big
                u_v = sec[0].soft if sec else big
                late_ds = len([o for o in dsr if o.soft <= g + 1])
                if cap >= 2 and excl and u_ex <= min(u_ds, u_v + 3) and not (late_ds >= 1 and u_ex > g):
                    chosen = [excl[0]]
                elif dsr:
                    chosen = [dsr[0]]
                    if cap >= 2:
                        d2 = dsr[1] if len(dsr) > 1 else None
                        if d2 is not None and d2.soft <= g + 1 and (not sec or d2.soft <= u_v):
                            chosen.append(d2)
                        elif sec:
                            chosen.append(sec[0])
                        elif d2 is not None and d2.soft <= g + 4:
                            chosen.append(d2)
                elif sec and (u_v <= u_ex or cap < 2):
                    chosen = [sec[0]]
                    if cap >= 2 and not prev_vv and len(sec) > 1 and sec[1].soft <= g + 10:
                        chosen.append(sec[1])
                elif excl and cap >= 2:
                    chosen = [excl[0]]
            prev_vv = len(chosen) == 2 and all(o.kind == "V4" for o in chosen)
            for o in chosen:
                if o in active and ready(o):
                    place(o)
                    vec += 2 if o.kind in ("V8", "DMA", "DSW", "LD", "ST") else 1
            if nsc + vec < 3 and not bars:
                try_scalars(nsc + 1 if nsc + vec == 2 else 3 - vec)
            while True:
                forced = [o for o in active if o.hi <= g]
                if not forced:
                    break
                forced.sort(key=lambda o: (0 if o.kind == "S" else 1 if o.kind in DSK else 2, o.seq))
                pick = None
                for o in forced:
                    if all(p.placed for p in o.preds):
                        pick = o
                        break
                if pick is None:
                    o = forced[0]
                    raise RuntimeError(f"{self.name}: forced op {o} at gap {g} has unplaced preds {[p for p in o.preds if not p.placed]}")
                place(pick)
                self.stats["forced"] = self.stats.get("forced", 0) + 1
        if prefix is not None:
            inv = {id(self._map[id(p)]): p for p in prefix if id(p) in self._map}
            for o in self.out[len(prefix):]:
                if o.kind == "WAIT":
                    o.need_ds = [inv.get(id(d), d) for d in o.need_ds]
        left = [o for o in fill if not o.placed]
        if left:
            raise RuntimeError(f"{self.name}: unplaced {left[:5]}")
        return self.out

    def estimate(self):
        t = 0
        cur = None
        for op in self.out:
            if op.kind == "M":
                if cur is not None:
                    t += max(16, cur)
                cur = 4
                first = True
                continue
            if cur is None:
                cur = 0
                first = False
            if op.kind in ("S", "WAIT", "BAR", "BR"):
                cur += 4
            elif op.kind == "NOP":
                cur += 4 * states(op)
            elif op.kind == "LABEL":
                pass
            else:
                if cur == 4 and first:
                    cur = 8
                cur += 8 if op.kind in ("V8", "DMA", "LD", "ST") else 16 if op.kind == "DSW" else 4
        if cur is not None:
            t += max(16, cur)
        return t


def resolve_waits(dyn):
    vmq = []
    dsq = []
    for lst in dyn:
        for op in lst:
            if op.kind == "WAIT":
                nv = None
                nl = None
                if op.need_tags:
                    if "ALL" in op.need_tags:
                        nv = 0
                    else:
                        last = -1
                        for t in op.need_tags:
                            idxs = [i for i, x in enumerate(vmq) if x == t]
                            if idxs:
                                last = max(last, idxs[-1])
                        nv = len(vmq) - 1 - last
                    nv = min(nv, 63)
                    op.nvm = nv if op.nvm is None else min(op.nvm, nv)
                if op.need_ds:
                    if "ALL" in op.need_ds:
                        nl = 0
                    else:
                        last = -1
                        for d in op.need_ds:
                            if d.name == "DUMMY":
                                idxs = [i for i, x in enumerate(dsq) if set(x.writes) & set(d.writes)]
                            else:
                                idxs = [i for i, x in enumerate(dsq) if x is d]
                            if idxs:
                                last = max(last, idxs[-1])
                        nl = len(dsq) - 1 - last
                    nl = min(nl, 15)
                    op.nlg = nl if op.nlg is None else min(op.nlg, nl)
                if nv is not None:
                    vmq = vmq[len(vmq) - nv:] if nv < len(vmq) else vmq
                    if nv == 0:
                        vmq = []
                if nl is not None:
                    dsq = dsq[len(dsq) - nl:] if nl < len(dsq) else dsq
                    if nl == 0:
                        dsq = []
            elif op.kind in VMEM:
                vmq.append(op.tag)
            elif op.kind in DSK:
                dsq.append(op)


def check_dyn(dyn, expect=None):
    seq = [op for lst in dyn for op in lst]
    errs = []
    issued = {}
    landed = {}
    page_state = {}
    for op in seq:
        if op.kind == "DMA":
            issued[op.tag] = issued.get(op.tag, 0) + 1
        if op.kind == "WAIT" and expect:
            for t in op.need_tags:
                if t in expect:
                    if issued.get(t, 0) != expect[t]:
                        errs.append(f"publish of {t}: issued {issued.get(t, 0)} != {expect[t]}")
                    issued[t] = 0
    dsq = []
    vmq = []
    for i, op in enumerate(seq):
        d = 0
        j = i - 1
        while j >= 0 and d < MAXH:
            p = seq[j]
            if hazard_dist(p, op) > d:
                errs.append(f"hazard {hazard_dist(p, op)}>{d}: {p.text}  ->  {op.text}")
            d += states(p)
            j -= 1
        if op.kind == "WAIT":
            if op.nlg is not None:
                dsq = dsq[len(dsq) - op.nlg:] if op.nlg and op.nlg < len(dsq) else (dsq if op.nlg else [])
            if op.nvm is not None:
                vmq = vmq[len(vmq) - op.nvm:] if op.nvm and op.nvm < len(vmq) else (vmq if op.nvm else [])
            continue
        regs = set(op.reads) | set(op.writes)
        for q in dsq:
            if q.kind == "DS" and set(q.writes) & regs:
                errs.append(f"unwaited DS {q.text} -> {op.text}")
        for q in vmq:
            if q.kind == "LD" and set(q.writes) & regs:
                errs.append(f"unwaited LD {q.text} -> {op.text}")
        if op.kind in DSK:
            dsq.append(op)
        if op.kind in VMEM:
            vmq.append(op)
    return errs


def render(lst):
    out = []
    for op in lst:
        if op.kind == "WAIT":
            parts = []
            if op.nvm is not None:
                parts.append(f"vmcnt({op.nvm})")
            if op.nlg is not None:
                parts.append(f"lgkmcnt({op.nlg})")
            if not parts:
                raise RuntimeError("unresolved wait")
            out.append("    s_waitcnt " + " ".join(parts))
        elif op.kind == "LABEL":
            out.append(op.text)
        else:
            out.append("    " + op.text)
    return "\n".join(out)


def check_lds(dyn):
    seq = [op for lst in dyn for op in lst]
    errs = []
    content = {}
    rd = {}
    vmq = []
    dsq = []
    for op in seq:
        if op.kind == "WAIT":
            if op.nvm is not None:
                n = len(vmq) - op.nvm
                if n > 0:
                    for q in vmq[:n]:
                        if q.ldsw:
                            for p in q.ldsw[0]:
                                if content.get(p, [None])[0] == q.ldsw[1]:
                                    content[p][2] -= 1
                                    if content[p][2] == 0:
                                        content[p][1] = 1
                    vmq = vmq[n:]
            if op.nlg is not None:
                n = len(dsq) - op.nlg
                if n > 0:
                    for q in dsq[:n]:
                        if q.ldsr:
                            for p in q.ldsr[0]:
                                rd[p][1] -= 1
                                if rd[p][1] == 0:
                                    rd[p][0] = 1
                        if q.ldsw:
                            for p in q.ldsw[0]:
                                content[p][2] -= 1
                                if content[p][2] == 0:
                                    content[p][1] = 1
                    dsq = dsq[n:]
        elif op.kind == "BAR":
            for p, c in content.items():
                if c[1] == 1:
                    c[1] = 2
            for p, r in rd.items():
                if r[0] == 1:
                    r[0] = 2
        else:
            if op.ldsr:
                for p in op.ldsr[0]:
                    c = content.get(p)
                    if c is None or c[0] != op.ldsr[1] or c[1] != 2:
                        errs.append(f"LDS read of page {p} expects {op.ldsr[1]} but has {c}: {op.text}")
                    r = rd.setdefault(p, [2, 0])
                    r[0] = 0
                    r[1] += 1
            if op.ldsw:
                for p in op.ldsw[0]:
                    c = content.get(p)
                    if c is not None and c[0] == op.ldsw[1] and c[1] == 0 and rd.get(p, [2])[0] == 2 and c[3]:
                        c[2] += 1
                        continue
                    if rd.get(p, [2])[0] != 2:
                        errs.append(f"LDS write of page {p} ({op.ldsw[1]}) while reads not retired {rd[p]}: {op.text}")
                    if c is not None and c[1] == 0:
                        errs.append(f"LDS write of page {p} ({op.ldsw[1]}) over in-flight {c}")
                    content[p] = [op.ldsw[1], 0, 1, True]
            if op.kind in VMEM:
                vmq.append(op)
            if op.kind in DSK:
                dsq.append(op)
    return errs
```

```python
import os
import sys
from sched import *

CFG = dict(LEAD=8, PQ=13, SP=3, INKERNEL=1, KVPOL="nt", DUMP="", PEND=3, STAMP=0, WPOL="", XPOL="", NULL="", ABL="", TOUCH=1, SPQ=4.3, SPA=5.5, TQ=28, TO=40, TX=42, BARCAP=0, TX0=0, JX=1, TPOL='', KVT=0, KVT0=2, KVTS=2)
for k in list(CFG):
    if k in os.environ:
        CFG[k] = type(CFG[k])(os.environ[k])

NAME = "concat_heads__gqa_block_cached__mha_block_cached__near_ridge"

def Oacc(dt, qt): return ("v", (dt * 3 + qt) * 4)
def Qf(u, qt): return ("v", 96 + (u * 3 + qt) * 4)
def Sb(b, kt, qt): return ("v", 144 + b * 24 + (kt * 3 + qt) * 4)
def Qacc(dt, qt):
    u, e = dt >> 1, dt & 1
    return Qf(u, qt) if e == 0 else ("v", 144 + (u * 3 + qt) * 4)
def Pf(qt): return ("v", 192 + 4 * qt)
def NEGM(qt): return ("v", 204 + 4 * qt)
POOL = [("a", 240), ("a", 244), ("a", 248), ("a", 252), ("v", 216), ("v", 220)]
def Lr(qt): return 224 + qt
def RINV(qt): return 248 + qt
vTq, vTo, vTx, vDum = 227, 228, 229, 251
vK = [230, 231]
vV = [232, 233, 234, 235]
vWo, vO, vKVd, vWxd, vWqA, vWqB = 236, 237, 238, 239, 240, 241
vW = [242, 243]
vX = [244, 245]
vOw = 246
vT = [247, 248, 249, 250, 251, 252, 253, 254, 255]
def OUT(cb, q6): return ("a", (cb * 6 + q6) * 4)
def Ofr(q6): return ("a", 216 + 4 * q6)
def Xb(b, qt): return Ofr(qt) if b == 0 else Ofr(3 + qt) if b == 1 else Pf(qt)

SRD_K, SRD_V, SRD_WQ, SRD_X, SRD_WO, SRD_WS, SRD_OUT, SRD_DBG, SRD_KR, SRD_VR = 4, 8, 12, 16, 20, 24, 28, 32, 36, 40
sK, sV, sWq, sX, sWo, sM5, sW1k, sRound, sT = 44, 45, 46, 47, 50, 51, 52, 53, 54
sCol = 56
sWave, sJ, sGrp, sAdj, sRet, sC = 65, 66, 67, 68, 69, 70
sTq, sTo, sTx = 94, 95, 96
sA = 72
sWs = 72
sColF = 82

LDS_R5 = 49152
LDS_R8 = 131072
QSCALE = 0x3E029402
import struct
QSCALE = struct.unpack("<I", struct.pack("<f", 1.4426950408889634 / (128 ** 0.5)))[0]
TLIM = 0x53800000


def srd(n): return f"s[{n}:{n + 3}]"
def sregs(n): return R("s", n, 4)
def V(n): return f"v{n}"


def v4(text, reads, writes, **kw): return Op(text, "V4", reads, writes, **kw)
def v8(text, reads, writes, **kw): return Op(text, "V8", reads, writes, **kw)
def sop(text, reads=(), writes=(), **kw): return Op(text, "S", reads, writes, **kw)


def ds128(dst, addr, off, ldsr, **kw):
    o = Op(f"ds_read_b128 {rs(dst[0], dst[1], 4)}, v{addr} offset:{off}", "DS", [V(addr)], R(dst[0], dst[1], 4), **kw)
    o.ldsr = ldsr
    assert 0 <= off < 65536
    return o


def dstr(dst, half, addr, off, ldsr, **kw):
    b = dst[1] + 2 * half
    o = Op(f"ds_read_b64_tr_b16 {rs(dst[0], b, 2)}, v{addr} offset:{off}", "DS", [V(addr)], R(dst[0], b, 2), **kw)
    o.ldsr = ldsr
    assert 0 <= off < 65536
    return o


def dma(voff, s_rd, soff, imm, tag, ldsw, pol=""):
    o = Op(f"buffer_load_dwordx4 v{voff}, {srd(s_rd)}, s{soff} offen offset:{imm}{' ' + pol if pol else ''} lds",
           "DMA", [V(voff), f"s{soff}", "m0"] + sregs(s_rd), [], tag=tag)
    o.ldsw = ldsw
    assert 0 <= imm < 4096
    return o


def r5pages(slot): return [("r5", slot, q) for q in range(4)]


def page_laps():
    cur = [6, 7, 3, 4, 5, 0, 1, 2]
    laps = [cur[:]]
    for L in range(1, 9):
        st = L & 1
        for i in range(st, 7, 2):
            if cur[i] > cur[i + 1]:
                cur[i], cur[i + 1] = cur[i + 1], cur[i]
        laps.append(cur[:])
    assert laps[-1] == list(range(8)), laps
    return [p for lap in laps for p in lap]


WOPAGE = page_laps()


def unit_of(n):
    n %= 50
    if n < 18: return ("W", n)
    if n == 18: return ("K", 0)
    if n == 49: return ("V", 15)
    m = n - 19
    return ("K", m // 2 + 1) if m % 2 == 0 else ("V", m // 2)


def unit_dma_ops(n):
    typ, idx = unit_of(n)
    slot = n % 5
    tag = f"U{n % 50}"
    ops = []
    for hf in range(2):
        ops.append(sop(f"s_add_u32 m0, s{sM5}, {slot * 8192 + hf * 896}", [f"s{sM5}"], ["m0"]))
        for a in range(2):
            imm = a * 2048 + hf * 128
            if typ == "W":
                ops.append(dma(vWqA if a == 0 else vWqB, SRD_WQ, sWq, imm, tag, (r5pages(slot), tag), CFG['WPOL']))
            elif typ == "K":
                ops.append(dma(vKVd, SRD_K, sK, imm, tag, (r5pages(slot), tag), CFG["KVPOL"]))
            else:
                ops.append(dma(vKVd, SRD_V, sV, imm, tag, (r5pages(slot), tag), CFG["KVPOL"]))
    if typ == "W":
        if idx < 17:
            ops.append(sop(f"s_add_u32 s{sWq}, s{sWq}, 262144", [f"s{sWq}"], [f"s{sWq}"]))
        else:
            ops.append(sop(f"s_sub_u32 s{sWq}, s{sWq}, {17 * 262144 - 512}", [f"s{sWq}"], [f"s{sWq}"]))
    else:
        r = sK if typ == "K" else sV
        ops.append(sop(f"s_add_u32 s{r}, s{r}, 8192", [f"s{r}"], [f"s{r}"]))
        if idx == 15:
            ops.append(sop(f"s_add_u32 s{r}, s{r}, s{sAdj}", [f"s{r}", f"s{sAdj}"], [f"s{r}"]))
    return ops


def xpages(i): return [("r8", 3 * (i & 1) + t) for t in range(3)]


def x_dma_ops(i):
    tag = f"X{i}"
    ops = []
    for t in range(3):
        ops.append(sop(f"s_add_u32 m0, s{sW1k}, {LDS_R8 + (i & 1) * 12288 + t * 4096 - i * 128}", [f"s{sW1k}"], ["m0"]))
        ops.append(dma(vWxd, SRD_X, sX + t, i * 128, tag, (xpages(i), tag), CFG['XPOL']))
    return ops


def wo_dma_ops(j):
    kk, cb = divmod(j, 9)
    tag = f"WO{j}"
    pg = WOPAGE[j]
    ops = [sop(f"s_add_u32 s{sT}, s{sCol + cb}, {kk * 36864}", [f"s{sCol + cb}"], [f"s{sT}"]),
           sop(f"s_add_u32 m0, s{sW1k}, {LDS_R8 + pg * 4096}", [f"s{sW1k}"], ["m0"]),
           dma(vWxd, SRD_WO, sT, 0, tag, ([("r8", pg)], tag), CFG['WPOL'])]
    return ops


def touch(v, s_rd, soff, imm=0, pol=None):
    pol = CFG["TPOL"] if pol is None else pol
    return Op(f"buffer_load_dword v{vDum}, v{v}, {srd(s_rd)}, s{soff} offen offset:{imm}{' ' + pol if pol else ''}", "LD",
              [V(v), f"s{soff}"] + sregs(s_rd), [], tag="T")


def touch_multi(v, s_rd, soff, step):
    ops = [touch(v, s_rd, soff)]
    for k in range(1, CFG["JX"]):
        ops.append(sop(f"s_add_u32 s{sT}, s{soff}, {k * step}", [f"s{soff}"], [f"s{sT}"]))
        ops.append(touch(v, s_rd, sT))
    return ops


def touch_q():
    return touch_multi(vTq, SRD_WQ, sTq, 9 * 8192) + [
            sop(f"s_cmp_lt_u32 s{sRound}, 2\n    s_cselect_b32 s{sT}, 512, 0\n    s_add_u32 s{sTq}, s{sTq}, s{sT}",
                [f"s{sTq}", f"s{sRound}"], [f"s{sTq}", f"s{sT}"])]


def touch_o():
    return touch_multi(vTo, SRD_WO, sTo, 36 * 128) + [sop(f"s_add_u32 s{sTo}, s{sTo}, 294912", [f"s{sTo}"], [f"s{sTo}"])]


def touch_x():
    ops = []
    for k in range(4):
        ops.append(sop(f"s_add_u32 s{sT}, s{sTx}, {k * 6912}", [f"s{sTx}"], [f"s{sT}"]))
        ops.append(touch(vTx, SRD_X, sT, pol=""))
    return ops


def w_reads(ks, dt, buf, **kw):
    u, e = dt >> 1, dt & 1
    slot = ks % 5
    return [dstr(buf, sec, vW[u & 1], slot * 8192 + sec * 512 + (u >> 1) * 1024 + 8 * e, (r5pages(slot), f"U{ks}"), **kw)
            for sec in range(2)]


def x_read(ks, qt, **kw):
    i = ks >> 1
    return ds128(Xb(ks % 3, qt), vX[ks & 1], (i & 1) * 12288 + qt * 2048, (xpages(i), f"X{i}"), **kw)


def preread_dummies():
    d = []
    for dt in range(CFG["PEND"]):
        for h in range(2):
            d.append(Op("dummy", "DS", [], R(POOL[dt][0], POOL[dt][1] + 2 * h, 2), name="DUMMY"))
    for ks in range(2):
        for qt in range(3):
            x = Xb(ks, qt)
            d.append(Op("dummy", "DS", [], R(x[0], x[1], 4), name="DUMMY"))
    return d


def norm_ops(lo):
    ops = []
    t = vT[0]
    for qt in range(3):
        l = Lr(qt)
        for sw in ("32", "16"):
            ops.append(v4(f"v_mov_b32 v{t}, v{l}", [V(l)], [V(t)]))
            ops.append(v8(f"v_permlane{sw}_swap_b32 v{t}, v{l}", [V(t), V(l)], [V(t), V(l)]))
            ops.append(v4(f"v_add_f32 v{l}, v{l}, v{t}", [V(l), V(t)], [V(l)]))
        ops.append(v8(f"v_rcp_f32 v{RINV(qt)}, v{l}", [V(l)], [V(RINV(qt))], trans=True))
    wr = []
    for u in range(4):
        for qt in range(3):
            a, b = Oacc(2 * u, qt)[1], Oacc(2 * u + 1, qt)[1]
            for r in list(range(a, a + 4)) + list(range(b, b + 4)):
                ops.append(v4(f"v_mul_f32 v{r}, v{RINV(qt)}, v{r}", [V(r), V(RINV(qt))], [V(r)]))
            for k, src in enumerate((a, a + 2, b, b + 2)):
                ops.append(v4(f"v_cvt_pk_bf16_f32 v{a + k}, v{src}, v{src + 1}", [V(src), V(src + 1)], [V(a + k)]))
            w = Op(f"ds_write_b128 v{vOw}, v[{a}:{a + 3}] offset:{(u * 6 + qt) * 1024}", "DSW", [V(vOw)] + R("v", a, 4), [], lo=lo)
            w.ldsw = ([("O", u), ("O", u + 4)], "O")
            ops.append(w)
            wr.append(w)
    return ops, wr


class Layout:
    def __init__(self, first):
        self.first = first
        self.groups = {}
        j = 0
        for n in range(50):
            g = []
            if not first and n >= 18:
                if n == 18:
                    g = [(j + k, 0) for k in range(8)]
                elif n in (19, 20):
                    g = [(j, 0), (j + 1, 8), (j + 2, 16)]
                else:
                    g = [(j, 0), (j + 1, 12)]
            j += len(g)
            self.groups[n] = g
        assert j == (0 if first else 72)
        pos = 0
        self.start = {}
        self.upos = {}
        self.gpos = {}
        self.seq = []
        for n in range(50):
            self.start[n] = pos
            gl = list(self.groups[n])
            self.upos[n] = []
            for i in range(25):
                while gl and gl[0][1] == i:
                    self.gpos[gl[0][0]] = pos
                    self.seq.append(("G", gl[0][0], n))
                    pos += 6
                    gl.pop(0)
                if i < 24:
                    self.upos[n].append(pos)
                    self.seq.append(("U", n, i))
                    pos += 1
        self.N = pos
        B = {}
        PQ = CFG["PQ"]
        for n in range(1, 50):
            if n <= 18 or first:
                B[n] = self.upos[n - 1][PQ]
            else:
                B[n] = self.upos[n - 1][20]
        if not first:
            B["X1"] = self.gpos[2] + 5
            B["X2"] = self.gpos[5] + 5
        self.B = B
        self.barlist = sorted(B.values())
        self.gap2name = {g: k for k, g in B.items()}

    def unit_free(self, n):
        if n <= 16 or (self.first and n <= 47):
            return self.B[n + 2]
        if self.first:
            return self.B[49] if n == 47 else (None if n == 49 else "LATE")
        if n == 17:
            return self.B["X1"]
        if n <= 48:
            return self.B[n + 1]
        return None


def build_round(first, final):
    L = Layout(first)
    reg = Region(("first" if first else "body") + ("_final" if final else ""), lead=CFG["LEAD"])
    B = L.B
    bar = {k: reg.barrier(gap=g, name=str(k)) for k, g in B.items()}
    if first:
        g = L.upos[49][CFG["PQ"]]
        B["E"] = g
        bar["E"] = reg.barrier(gap=g, name="E")
    N = L.N
    dmas = []
    pool_i = [0]

    def nextbuf():
        b = POOL[pool_i[0] % 6]
        pool_i[0] += 1
        return b

    def publish(tag, key):
        bar[key].need_tags.append(tag)

    def add_reads(ops, pub, free):
        for o in ops:
            o.lo = B[pub] if pub is not None else -1
            if free is not None:
                o.hi = B[free] - 4
                bar[free].need_ds.append(o)
            reg.add(o)

    def free_key(n):
        if first:
            if n <= 47: return n + 2
            return "E" if n == 48 else None
        if n <= 16: return n + 2
        if n == 17: return "X1"
        if n <= 48: return n + 1
        return None

    for n in range(1, 50):
        publish(f"U{n}", n)
    dmas.append((B[1], 0, unit_dma_ops(4), B[4] - 1))
    for n in range(0, 49):
        m = n + 5
        fk = free_key(n)
        if m < 50:
            dmas.append((B[fk], m, unit_dma_ops(m), B[m] - 1))
        elif not final:
            dmas.append((B[fk], m, unit_dma_ops(m), (B[49] - 1) if m == 50 else N - 1))
    pre_pub = 49 if not first else "E"
    if not final:
        publish("U0", 49 if not first else "E")
        if first:
            for d in dmas:
                if d[1] == 50:
                    dmas[dmas.index(d)] = (d[0], d[1], d[2], B["E"] - 1)
    for i in range(1, 9):
        publish(f"X{i}", 2 * i)
    for i in range(0, 7):
        dmas.append((B[2 * i + 1], 100 + i, x_dma_ops(i + 2), B[2 * (i + 2)] - 1))
    wo_pub, wo_free = {}, {}
    if not first:
        for j in range(72):
            fu = L.gpos[j]
            cands = [g for g in L.barlist if g <= fu - 6]
            wo_pub[j] = L.gap2name[cands[-1]]
            cands = [g for g in L.barlist if g >= fu - 3]
            wo_free[j] = L.gap2name[cands[0]] if cands else None
            publish(f"WO{j}", wo_pub[j])
        lastuse = {6: B[11], 7: B[11], 3: B[15], 4: B[15], 5: B[15], 0: B[17], 1: B[17], 2: B[17]}
        for j in range(72):
            pg = WOPAGE[j]
            dmas.append((lastuse[pg], 200 + j, wo_dma_ops(j), B[wo_pub[j]] - 1))
            lastuse[pg] = B[wo_free[j]] if wo_free[j] is not None else None
        x0_free = max(lastuse[p] for p in (0, 1, 2))
        x1_free = max(lastuse[p] for p in (3, 4, 5))
        final_pages = lastuse
    else:
        x0_free, x1_free = B[44], B[45]
    if not final:
        dmas.append((x0_free, 300, x_dma_ops(0), B[pre_pub] - 1))
        dmas.append((x1_free, 301, x_dma_ops(1), N - 1))
        publish("X0", pre_pub)
    else:
        reg.final_pages = final_pages
        for d in final_prefetch(L, final_pages):
            dmas.append(d)

    if CFG["TOUCH"]:
        if not final:
            dmas.append((B[CFG["TQ"]] + 1, 500, touch_q(), N - 1))
            tx = touch_x()
            for k in range(4 if CFG["TX"] else 0):
                dmas.append((B[CFG["TX"] + k] + 1, 502 + k, tx[2 * k:2 * k + 2], N - 1))
        elif CFG["TQ"] < 46:
            dmas.append((B[CFG["TQ"]] + 1, 500, touch_q(), N - 1))
            tx = touch_x()
            for k in range(4):
                if CFG["TX"] and CFG["TX"] + k < 46:
                    dmas.append((B[CFG["TX"] + k] + 1, 502 + k, tx[2 * k:2 * k + 2], N - 1))
        dmas.append((B[CFG["TO"]] + 1, 501, touch_o(), N - 1))
    if not first:
        for c in range(9):
            reg.add(sop(f"s_add_u32 s{sCol + c}, s{sCol + c}, 294912", [f"s{sCol + c}"], [f"s{sCol + c}"], lo=B[2], hi=B[10]))
        nops, wr = norm_ops(B[1])
        for o in nops:
            reg.add(o)
        for k, w in enumerate(wr):
            w.hi = B[13] - 4
            w.soft = B[1] + 40 + 19 * k
            w.lo = max(w.lo, w.soft - 6)
            bar[13].need_ds.append(w)
    bufs = {}
    for item in L.seq:
        if item[0] == "G":
            j = item[1]
            kk, cb = divmod(j, 9)
            if j == 0:
                pool_i[0] += 2
            if cb == 0:
                for q6 in range(6):
                    o = ds128(Ofr(q6), vO, (kk * 6 + q6) * 1024, ([("O", kk)], "O"))
                    o.lo = B[13]
                    reg.add(o)
            buf = nextbuf()
            pg = WOPAGE[j]
            add_reads([dstr(buf, sec, vWo, pg * 4096 + sec * 2048, ([("r8", pg)], f"WO{j}")) for sec in range(2)],
                      wo_pub[j], wo_free[j])
            for q6 in range(6):
                reg.add(mfma(OUT(cb, q6), buf, Ofr(q6), OUT(cb, q6)))
            continue
        _, n, i = item
        typ, idx = unit_of(n)
        f, qt = divmod(i, 3)
        slot = n % 5
        if typ == "W":
            ks = idx
            if i == 0 and ks >= 2 and ks % 2 == 0:
                pass
            if qt == 0:
                buf = nextbuf()
                bufs[n] = buf
                if not (ks == 0 and f < CFG["PEND"]):
                    add_reads(w_reads(ks, f, buf), ks if ks > 0 else None, free_key(n))
            reg.add(mfma(Qacc(f, qt), bufs[n], Xb(ks % 3, qt), None if ks == 0 else Qacc(f, qt)))
            if ks % 2 == 1 and ks < 17 and i == 23:
                pass
            if i == 0 and ks % 2 == 1 and ks < 17:
                xi = (ks + 1) // 2
                rd = [x_read(2 * xi + k, q) for k in range(2) for q in range(3)]
                add_reads(rd, 2 * xi, 2 * xi + 1)
            if n == 17 and i == 23:
                for u in range(4):
                    for q in range(3):
                        a, b = Qacc(2 * u, q)[1], Qacc(2 * u + 1, q)[1]
                        for r in list(range(a, a + 4)) + list(range(b, b + 4)):
                            reg.add(v4(f"v_mul_f32 v{r}, s{sC}, v{r}", [V(r), f"s{sC}"], [V(r)]))
                        for k, src in enumerate((a, a + 2, b, b + 2)):
                            reg.add(v4(f"v_cvt_pk_bf16_f32 v{a + k}, v{src}, v{src + 1}", [V(src), V(src + 1)], [V(a + k)]))
                for q in range(3):
                    reg.add(v4(f"v_mov_b32 v{Lr(q)}, 0", [], [V(Lr(q))], lo=B[14]))
        elif typ == "K":
            s = idx
            if n == 18 and i == 0 and first:
                pool_i[0] += 2
            if s == 0:
                u, kt = divmod(f, 2)
            else:
                kt, u = divmod(f, 4)
            if qt == 0:
                buf = nextbuf()
                bufs[n] = buf
                add_reads([ds128(buf, vK[u & 1], slot * 8192 + kt * 4096 + (u >> 1) * 1024, (r5pages(slot), f"U{n}"))],
                          n, free_key(n))
            S = Sb(s & 1, kt, qt)
            c = S if u > 0 else (None if s < 2 else NEGM(qt))
            reg.add(mfma(S, bufs[n], Qf(u, qt), c))
            if i == 23:
                if s == 0:
                    for q in range(3):
                        t, t2 = vT[1 + q], vT[0]
                        s0, s1 = Sb(0, 0, q)[1], Sb(0, 1, q)[1]
                        reg.add(v4(f"v_max3_f32 v{t}, v{s0}, v{s0 + 1}, v{s0 + 2}", R("v", s0, 3), [V(t)]))
                        reg.add(v4(f"v_max3_f32 v{t}, v{t}, v{s0 + 3}, v{s1}", [V(t), V(s0 + 3), V(s1)], [V(t)]))
                        reg.add(v4(f"v_max3_f32 v{t}, v{t}, v{s1 + 1}, v{s1 + 2}", [V(t), V(s1 + 1), V(s1 + 2)], [V(t)]))
                        reg.add(v4(f"v_max_f32 v{t}, v{t}, v{s1 + 3}", [V(t), V(s1 + 3)], [V(t)]))
                        for sw in ("32", "16"):
                            reg.add(v4(f"v_mov_b32 v{t2}, v{t}", [V(t)], [V(t2)]))
                            reg.add(v8(f"v_permlane{sw}_swap_b32 v{t2}, v{t}", [V(t), V(t2)], [V(t), V(t2)]))
                            reg.add(v4(f"v_max_f32 v{t}, v{t}, v{t2}", [V(t), V(t2)], [V(t)]))
                        nm = NEGM(q)[1]
                        for r in range(4):
                            reg.add(v4(f"v_sub_f32 v{nm + r}, 0, v{t}", [V(t)], [V(nm + r)]))
                for k2 in range(2):
                    for q in range(3):
                        b = Sb(s & 1, k2, q)[1]
                        for r in range(b, b + 4):
                            if s < 2:
                                nm = NEGM(q)[1] + (r - b)
                                reg.add(v4(f"v_add_f32 v{r}, v{nm}, v{r}", [V(r), V(nm)], [V(r)]))
                            reg.add(v8(f"v_exp_f32 v{r}, v{r}", [V(r)], [V(r)], trans=True))
                            reg.add(v4(f"v_add_f32 v{Lr(q)}, v{Lr(q)}, v{r}", [V(r), V(Lr(q))], [V(Lr(q))]))
        else:
            s = idx
            if i == 0:
                for q in range(3):
                    p = Pf(q)[1]
                    s0, s1 = Sb(s & 1, 0, q)[1], Sb(s & 1, 1, q)[1]
                    for k, src in enumerate((s0, s0 + 2, s1, s1 + 2)):
                        reg.add(v4(f"v_cvt_pk_bf16_f32 v{p + k}, v{src}, v{src + 1}", [V(src), V(src + 1)], [V(p + k)]))
            if qt == 0:
                buf = nextbuf()
                bufs[n] = buf
                add_reads([dstr(buf, sec, vV[f & 3], slot * 8192 + sec * 4096 + (f >> 2) * 1024, (r5pages(slot), f"U{n}"))
                           for sec in range(2)], n, free_key(n))
            reg.add(mfma(Oacc(f, qt), bufs[n], Pf(qt), None if s == 0 else Oacc(f, qt)))
    assert pool_i[0] % 6 == 0, pool_i[0]
    t = vT[0]
    reg.add(v4(f"v_add_f32 v{t}, v{Lr(0)}, v{Lr(1)}", [V(Lr(0)), V(Lr(1))], [V(t)]))
    reg.add(v4(f"v_add_f32 v{t}, v{t}, v{Lr(2)}", [V(t), V(Lr(2))], [V(t)]))
    reg.add(v4(f"v_cmp_nge_f32 vcc, {TLIM:#x}, v{t}", [V(t)], ["vcc"], hi=N - 4))
    if not final:
        pre = []
        for dt in range(CFG["PEND"]):
            pre += w_reads(0, dt, POOL[dt])
        pre += [x_read(k, q) for k in range(2) for q in range(3)]
        for k, o in enumerate(pre):
            o.lo = B[pre_pub]
            o.hi = N - 1
            o.soft = N - 1 - CFG["LEAD"] + (k // 2 if k < 2 * CFG["PEND"] else (0 if k < 2 * CFG["PEND"] + 3 else 6))
            reg.add(o)
    dmas.sort(key=lambda d: (d[0], d[3], d[1]))
    last = -100
    for fg, _, ops, hi in dmas:
        for o in ops:
            o.hi = hi
            if o.kind in ("DMA", "LD"):
                sp = CFG["SPQ"] if last < L.start[18] else (CFG["SPA"] if not first else CFG["SP"])
                lo = max(fg + 1, min(last + sp, hi - 1))
                o.lo = int(lo)
                o.soft = min(int(lo) + 2, hi)
                last = lo
            else:
                o.lo = fg
            reg.add(o)
    reg.L = L
    return reg


FPAGES = None


def page_addr(p):
    if p[0] == "r8":
        return LDS_R8 + p[1] * 4096
    _, slot, q = p
    return LDS_R5 + (q >> 1) * 40960 + slot * 8192 + (q & 1) * 4096


def final_dma_ops(i, p):
    cb, kk = divmod(i, 8)
    tag = f"F{i}"
    return [sop(f"s_add_u32 s{sT}, s{sColF + cb}, {kk * 36864}", [f"s{sColF + cb}"], [f"s{sT}"]),
            sop(f"s_add_u32 m0, s{sW1k}, {page_addr(p)}", [f"s{sW1k}"], ["m0"]),
            dma(vWxd, SRD_WO, sT, 0, tag, ([p], tag), CFG['WPOL'])]


def final_prefetch(L, r8free):
    global FPAGES
    B = L.B
    av = []
    for n in range(45, 49):
        for q in range(4):
            av.append((B[n + 1], ("r5", n % 5, q)))
    late = []
    for p, g in r8free.items():
        if g is None:
            late.append(("r8", p))
        else:
            av.append((g, ("r8", p)))
    av.sort(key=lambda x: x[0])
    early = [a for a in av if a[0] >= B[46]]
    assert len(early) == len(av)
    FPAGES = [p for _, p in av] + late + [("r5", 4, q) for q in range(4)]
    res = []
    for i, (g, p) in enumerate(av):
        if g <= B[48]:
            ops = final_dma_ops(i, p)
            res.append((max(g, B[46] + 0), 400 + i, ops, L.N - 1))
    final_prefetch.count = len(res)
    return res


def publish_ops(cb, qpair, stage):
    ops = []
    t = stage
    a0 = OUT(cb, 2 * qpair)[1]
    for r in range(8):
        ops.append(v4(f"v_accvgpr_read_b32 v{t + r}, a{a0 + r}", [f"a{a0 + r}"], [V(t + r)]))
    for k in range(4):
        ops.append(v4(f"v_cvt_pk_bf16_f32 v{t + k}, v{t + 2 * k}, v{t + 2 * k + 1}", [V(t + 2 * k), V(t + 2 * k + 1)], [V(t + k)]))
    if "s" not in CFG["NULL"]:
      ops.append(Op(f"buffer_store_dwordx4 v[{t}:{t + 3}], v{vO}, {srd(SRD_WS)}, s{sWs + cb} offen offset:{qpair * 1024} sc1",
                  "ST", R("v", t, 4) + [V(vO), f"s{sWs + cb}"], [], tag=f"P{cb}"))
    return ops


def build_final():
    inker = CFG["INKERNEL"]
    reg = Region("final", lead=CFG["LEAD"])
    npre = final_prefetch.count
    pages = FPAGES
    assert len(pages) == 28
    vL, vH = vK[0], vK[1]
    N = 432
    bars = {}
    b0 = reg.barrier(gap=-1, name="O")
    pre = []
    pre.append(v4(f"v_subrev_u32 v{vL}, {LDS_R8 - LDS_R5}, v{vWo}", [V(vWo)], [V(vL)]))
    pre.append(v4(f"v_subrev_u32 v{vH}, 16384, v{vWo}", [V(vWo)], [V(vH)]))
    nops, wr = norm_ops(None)
    pre += nops
    tmp = Region("final_pre")
    tmp.dsq = []
    tmp.out = []
    head = [Op("s_waitcnt", "WAIT"), Op("s_barrier", "BAR", name="F0")]
    head[0].need_ds = ["ALL"]
    tmp.out += head
    issued = npre
    nextra = 28 - npre
    extra = []
    for i in range(npre, 28):
        extra += final_dma_ops(i, pages[i])
    k = 0
    for idx, o in enumerate(pre):
        tmp._pad(o)
        tmp.out.append(o)
        if idx % 4 == 3 and k < len(extra):
            tmp._pad(extra[k]); tmp.out.append(extra[k]); k += 1
    while k < len(extra):
        tmp._pad(extra[k]); tmp.out.append(extra[k]); k += 1
    w = Op("s_waitcnt", "WAIT")
    w.need_ds = ["ALL"]
    tmp.out.append(w)
    reg.pre = tmp.out
    FB = {}
    for c in range(9):
        FB[c] = -1 if c == 0 else 48 * c - 10
    b0.need_tags = [f"F{i}" for i in range(8)]
    for c in range(1, 9):
        bars[c] = reg.barrier(gap=FB[c], name=f"C{c}", tags=[f"F{8 * c + k}" for k in range(8)])
    bars[0] = b0
    pool_i = 0
    dmas = []
    for c in range(9):
        for kk in range(8):
            i = 8 * c + kk
            if c == 0:
                for q6 in range(6):
                    o = ds128(("v", 4 * (kk * 6 + q6)), vO, (kk * 6 + q6) * 1024, ([("O", kk)], "O"))
                    o.lo = -1
                    reg.add(o)
            buf = POOL[pool_i % 6]
            pool_i += 1
            p = pages[i % 28]
            ad = page_addr(p)
            va, off = (vL, ad - LDS_R5) if ad < 114688 else (vH, ad - 114688)
            for sec in range(2):
                o = dstr(buf, sec, va, off + sec * 2048, ([p], f"F{i}"))
                o.lo = FB[c]
                if c + 1 <= 8:
                    fk = c + 1 if 48 * c + 6 * kk <= FB[c + 1] - 3 else c + 2
                    if fk <= 8:
                        o.hi = FB[fk] - 4
                        bars[fk].need_ds.append(o)
                reg.add(o)
            if i + 28 < 72:
                fk = c + 1 if 48 * c + 6 * kk <= FB[c + 1] - 3 else c + 2
                dmas.append((FB[fk], i + 28, final_dma_ops(i + 28, p), FB[(i + 28) // 8] - 1))
            for q6 in range(6):
                reg.add(mfma(OUT(c, q6), buf, ("v", 4 * (kk * 6 + q6)), OUT(c, q6)))
        if c <= (6 if inker else 7):
            for qp in range(3):
                ops = publish_ops(c, qp, 192 + 8 * qp)
                for o in ops:
                    o.soft = 48 * (c + 1) + 14 + 8 * qp
                    reg.add(o)
    dmas.sort(key=lambda d: (d[0], d[3], d[1]))
    last = -100
    for fg, _, ops, hi in dmas:
        for o in ops:
            o.hi = hi
            if o.kind == "DMA":
                lo = max(fg, min(last + CFG["SP"], hi - 1))
                o.lo = lo
                o.soft = min(lo + 2, hi)
                last = lo
            else:
                o.lo = fg
            reg.add(o)
    return reg


def straight(ops):
    t = Region("straight")
    t.out = []
    t.dsq = []
    for o in ops:
        t._pad(o)
        t.out.append(o)
    return t.out


def wait(vm=None, ds=False):
    w = Op("s_waitcnt", "WAIT")
    if vm is not None:
        w.need_tags = vm
    if ds:
        w.need_ds = ["ALL"]
    return w


def final_tail_simple():
    ops = [Op("s_nop 7", "NOP")]
    for qp in range(3):
        ops += publish_ops(8, qp, 192 + 8 * qp)
    ops.append(wait(["ALL"]))
    ops += stamp() + stamp_store()
    ops.append(Op("s_endpgm", "BR"))
    return straight(ops)


def final_tail_inkernel():
    ops = []
    A = ops.append
    A(wait(["ALL"]))
    A(Op("s_barrier", "BAR", name="sig"))
    A(sop(f"s_lshr_b32 s{sA + 20}, s{sGrp}, 0", [], [f"s{sA + 20}"]))
    text = f"""    s_cmp_lg_u32 s{sWave}, 0
    s_cbranch_scc1 L_nosig
    v_mov_b32 v{vT[0]}, 1
    v_mov_b32 v{vT[1]}, s{sRet}
    s_mov_b64 exec, 1
    s_nop 0
    buffer_atomic_add v{vT[0]}, v{vT[1]}, {srd(SRD_DBG)}, 0 offen sc1
    s_mov_b64 exec, -1
L_nosig:
    v_mov_b32 v{vT[1]}, s{sRet}
    s_mov_b32 s{sT}, 0
L_poll:
    buffer_load_dword v{vT[0]}, v{vT[1]}, {srd(SRD_DBG)}, 0 offen sc1
    s_add_u32 s{sT}, s{sT}, 1
    s_waitcnt vmcnt(0)
    v_readfirstlane_b32 s{sA + 20}, v{vT[0]}
    s_cmp_ge_u32 s{sT}, 0x40000
    s_cbranch_scc1 L_polled
    s_nop 2
    s_cmp_lt_u32 s{sA + 20}, 4
    s_cbranch_scc1 L_poll
L_polled:
    s_barrier
"""
    return straight(ops), text


def emit_reduce_block(cb, label):
    ops = []
    A = ops.append
    for d in range(1, 4):
        r = sA + 20 + d
        A(sop(f"s_add_u32 s{r}, s{sJ}, {d}", [f"s{sJ}"], [f"s{r}"]))
        A(sop(f"s_and_b32 s{r}, s{r}, 3", [f"s{r}"], [f"s{r}"]))
        A(sop(f"s_sub_u32 s{r}, s{r}, s{sJ}", [f"s{r}", f"s{sJ}"], [f"s{r}"]))
        A(sop(f"s_mul_i32 s{r}, s{r}, 12288", [f"s{r}"], [f"s{r}"]))
        A(sop(f"s_add_u32 s{r}, s{r}, s{sWs + cb}", [f"s{r}", f"s{sWs + cb}"], [f"s{r}"]))
    return ops


def prologue():
    T = []
    A = T.append
    A("    s_cmp_ge_u32 s2, 256")
    A("    s_cbranch_scc1 L_end")
    if CFG["STAMP"]:
        A("    s_memtime s[4:5]")
        A("    s_memrealtime s[6:7]")
        A("    s_waitcnt lgkmcnt(0)")
        A("    v_mov_b32 v253, s4")
        A("    v_mov_b32 v254, s6")
    A(f"    s_load_dwordx16 s[{sA}:{sA + 15}], s[0:1], 0")
    A(f"    s_load_dwordx8 s[{sA + 16}:{sA + 23}], s[0:1], 64")
    A(f"    s_load_dwordx2 s[{sA + 24}:{sA + 25}], s[0:1], 96")
    l, w = 1, 2
    A(f"    v_and_b32 v{l}, 63, v0")
    A(f"    v_lshrrev_b32 v{w}, 6, v0")
    A("    s_nop 0")
    A(f"    v_readfirstlane_b32 s{sWave}, v{w}")
    br, b, hh, ii = 98, 99, 100, 101
    JX = CFG["JX"]
    lj = {1: 0, 2: 1, 4: 2}[JX]
    A(f"    s_and_b32 s3, s2, 7")
    A(f"    s_lshr_b32 s{sT}, s2, 3")
    A(f"    s_and_b32 s{sJ}, s3, {(4 >> lj) - 1}")
    A(f"    s_lshl_b32 s{sJ}, s{sJ}, {lj}")
    A(f"    s_and_b32 s{b}, s{sT}, {JX - 1}")
    A(f"    s_add_u32 s{sJ}, s{sJ}, s{b}")
    A(f"    s_lshr_b32 s3, s3, {2 - lj}")
    A(f"    s_lshl_b32 s{b}, s3, {4 - lj}")
    A(f"    s_lshr_b32 s71, s{sT}, {lj + 1}")
    A(f"    s_add_u32 s{b}, s{b}, s71")
    A(f"    s_bfe_u32 s{br}, s{sT}, {0x10000 + lj}")
    A(f"    s_lshr_b32 s{hh}, s{sWave}, 1")
    A(f"    s_and_b32 s{ii}, s{sWave}, 1")
    A(f"    s_lshl_b32 s{sW1k}, s{sWave}, 10")
    A(f"    s_mul_i32 s{sM5}, s{hh}, 40960")
    A(f"    s_lshl_b32 s3, s{ii}, 12")
    A(f"    s_add_u32 s{sM5}, s{sM5}, s3")
    A(f"    s_add_u32 s{sM5}, s{sM5}, {LDS_R5}")
    A(f"    s_lshl_b32 s3, s{br}, 5")
    A(f"    s_add_u32 s3, s3, s{b}")
    A(f"    s_lshl_b32 s55, s3, 2")
    A(f"    s_mul_i32 s{sGrp}, s3, {9 * 49152}")
    A(f"    s_lshl_b32 s3, s{sJ}, 2")
    A(f"    s_add_u32 s3, s3, s{sWave}")
    A(f"    s_mul_i32 s3, s3, 3072")
    A(f"    s_add_u32 s{sGrp}, s{sGrp}, s3")
    A(f"    s_mul_i32 s{sX}, s{b}, 110592")
    A(f"    s_add_u32 s{sX + 1}, s{sX}, 36864")
    A(f"    s_add_u32 s{sX + 2}, s{sX}, 73728")
    A(f"    s_lshl_b32 s{sWq}, s{ii}, 17")
    A(f"    s_lshl_b32 s3, s{sJ}, 3")
    A(f"    s_add_u32 s3, s3, s{hh}")
    A(f"    s_lshl_b32 s3, s3, 8")
    A(f"    s_add_u32 s{sWq}, s{sWq}, s3")
    A(f"    s_mul_i32 s{sWo}, s{sJ}, 1179648")
    A(f"    s_lshl_b32 s3, s{sJ}, 1")
    A(f"    s_add_u32 s3, s3, 3")
    for c in range(9):
        A(f"    s_add_u32 s{sT}, s3, {c}")
        A(f"    s_sub_u32 s{sCol + c}, s{sT}, 9")
        A(f"    s_cmp_ge_u32 s{sT}, 9")
        A(f"    s_cselect_b32 s{sCol + c}, s{sCol + c}, s{sT}")
        A(f"    s_lshl_b32 s{sCol + c}, s{sCol + c}, 7")
    A(f"    s_lshl_b32 s{sK}, s{b}, 5")
    A(f"    s_lshl_b32 s3, s{sJ}, 3")
    A(f"    s_add_u32 s{sK}, s{sK}, s3")
    A(f"    s_lshr_b32 s3, s{sK}, 1")
    A(f"    s_add_u32 s{sK}, s{sK}, s{hh}")
    A(f"    s_cmp_eq_u32 s{br}, 0")
    A(f"    s_cselect_b32 s{sK}, s3, s{sK}")
    A(f"    s_cselect_b32 s{sAdj}, 0, 131072")
    A(f"    s_lshl_b32 s{sK}, s{sK}, 17")
    A(f"    s_lshl_b32 s3, s{ii}, 12")
    A(f"    s_add_u32 s{sK}, s{sK}, s3")
    A(f"    s_mov_b32 s{sV}, s{sK}")
    A(f"    s_mov_b32 s{sC}, {QSCALE:#x}")
    A(f"    s_mov_b32 s{sRound}, 0")
    t0, t1, t2, t3 = 247, 248, 249, 250
    A(f"    v_lshrrev_b32 v{t0}, 3, v{l}")
    A(f"    v_and_b32 v{t1}, 7, v{l}")
    A(f"    v_and_b32 v{t2}, 6, v{t0}")
    A(f"    v_xor_b32 v{t2}, v{t1}, v{t2}")
    A(f"    v_lshlrev_b32 v{t2}, 4, v{t2}")
    A(f"    v_lshl_add_u32 v{vKVd}, v{t0}, 8, v{t2}")
    A(f"    v_lshl_add_u32 v{t3}, v{w}, 3, v{t0}")
    A(f"    v_mul_u32_u24 v{t3}, 1152, v{t3}")
    A(f"    v_add_u32 v{vWxd}, v{t3}, v{t2}")
    A(f"    v_and_b32 v{t2}, 2, v{t0}")
    A(f"    v_xor_b32 v{t2}, v{t1}, v{t2}")
    A(f"    v_xor_b32 v{t3}, 4, v{t2}")
    A(f"    v_lshlrev_b32 v{t2}, 4, v{t2}")
    A(f"    v_lshlrev_b32 v{t3}, 4, v{t3}")
    A(f"    v_lshl_add_u32 v{vWqA}, v{t0}, 13, v{t2}")
    A(f"    v_lshl_add_u32 v{vWqB}, v{t0}, 13, v{t3}")
    A(f"    v_add_u32 v{vWqB}, {65536 - 2048}, v{vWqB}")
    A(f"    s_lshl_b32 s{sT}, s71, 2")
    A(f"    s_add_u32 s{sT}, s{sT}, s{sWave}")
    A(f"    s_mul_i32 s{sT}, s{sT}, {9 * JX}")
    A(f"    v_lshrrev_b32 v{t0}, 2, v{l}")
    A(f"    v_add_u32 v{t0}, s{sT}, v{t0}")
    A(f"    v_and_b32 v{t1}, 3, v{l}")
    A(f"    v_lshlrev_b32 v{t1}, 7, v{t1}")
    A(f"    v_lshl_add_u32 v{vTq}, v{t0}, 13, v{t1}")
    A(f"    s_lshl_b32 s{sT}, s{sT}, 2")
    A(f"    v_add_u32 v{t0}, s{sT}, v{l}")
    A(f"    v_lshlrev_b32 v{vTo}, 7, v{t0}")
    A(f"    v_lshlrev_b32 v{vTx}, 7, v{l}")
    A(f"    v_mov_b32 v{t0}, 0x40000000")
    A(f"    v_cmp_gt_u32 vcc, 36, v{l}")
    A(f"    s_nop 1")
    A(f"    v_cndmask_b32 v{vTq}, v{t0}, v{vTq}, vcc")
    A(f"    v_cndmask_b32 v{vTo}, v{t0}, v{vTo}, vcc")
    A(f"    v_cmp_gt_u32 vcc, 54, v{l}")
    A(f"    s_nop 1")
    A(f"    v_cndmask_b32 v{vTx}, v{t0}, v{vTx}, vcc")
    return T, (l, w, br, b, hh, ii)


def prologue2(ctx):
    l, w, br, b, hh, ii = ctx
    T = []
    A = T.append
    A("    s_waitcnt lgkmcnt(0)")
    A(f"    s_cmp_eq_u32 s{br}, 0")
    pa = {"x": sA + 0, "k": sA + 2, "v": sA + 4, "wq": sA + 6, "wo": sA + 8}
    pb = {"x": sA + 10, "k": sA + 12, "v": sA + 14, "wq": sA + 16, "wo": sA + 18}
    for key, s_ in (("wq", SRD_WQ), ("x", SRD_X), ("k", SRD_KR), ("v", SRD_VR), ("wo", SRD_WO)):
        A(f"    s_cselect_b32 s{s_}, s{pa[key]}, s{pb[key]}")
        A(f"    s_cselect_b32 s{s_ + 1}, s{pa[key] + 1}, s{pb[key] + 1}")
        A(f"    s_mov_b32 s{s_ + 3}, 0x20000")
    A(f"    s_mov_b32 s{SRD_WQ + 2}, 4718592")
    A(f"    s_mov_b32 s{SRD_X + 2}, 3538944")
    A(f"    s_mov_b32 s{SRD_WO + 2}, 4718592")
    A(f"    s_mov_b32 s{SRD_KR + 2}, 0x8000000")
    A(f"    s_cselect_b32 s{SRD_KR + 2}, 0x4000000, s{SRD_KR + 2}")
    A(f"    s_mov_b32 s{SRD_VR + 2}, s{SRD_KR + 2}")
    A(f"    s_cselect_b32 s3, s{hh}, 0")
    A(f"    s_cmp_eq_u32 s3, 0")
    A(f"    s_cselect_b32 s{SRD_K + 2}, s{SRD_KR + 2}, 0")
    A(f"    s_mov_b32 s{SRD_V + 2}, s{SRD_K + 2}")
    for d, s_ in ((SRD_K, SRD_KR), (SRD_V, SRD_VR)):
        A(f"    s_mov_b32 s{d}, s{s_}")
        A(f"    s_mov_b32 s{d + 1}, s{s_ + 1}")
        A(f"    s_mov_b32 s{d + 3}, 0x20000")
    for d, p, n in ((SRD_OUT, sA + 20, 7077888), (SRD_DBG, sA + 22, 256), (SRD_WS, sA + 24, 0x20000000)):
        A(f"    s_mov_b32 s{d}, s{p}")
        A(f"    s_mov_b32 s{d + 1}, s{p + 1}")
        A(f"    s_mov_b32 s{d + 2}, {n}")
        A(f"    s_mov_b32 s{d + 3}, 0x20000")
    for ch, r in (("k", SRD_K), ("k", SRD_V), ("q", SRD_WQ), ("x", SRD_X), ("o", SRD_WO), ("s", SRD_WS)):
        if ch in CFG["NULL"] and not (ch == "s" and CFG["STAMP"]):
            A(f"    s_mov_b32 s{r + 2}, 0")
    A(f"    s_mul_i32 s{sTx}, s{sWave}, 27648")
    A(f"    s_add_u32 s{sTx}, s{sTx}, s{sX}")
    A(f"    s_lshl_b32 s{sTq}, s{sJ}, 11")
    A(f"    s_mov_b32 s{sTo}, s{sWo}")
    A(f"    s_mul_i32 s3, s{b}, {96 * 2304}")
    A(f"    s_mul_i32 s{sT}, s{br}, 1152")
    A(f"    s_add_u32 s71, s3, s{sT}")
    return T


def prologue3(ctx):
    l, w, br, b, hh, ii = ctx
    T = []
    A = T.append
    t0, t1, t2, t3, t4, t5 = 3, 4, 5, 6, 7, 8
    A(f"    s_mul_i32 s3, s{hh}, 40960")
    A(f"    s_add_u32 s3, s3, {LDS_R5}")
    A(f"    v_and_b32 v{t0}, 15, v{l}")
    A(f"    v_lshrrev_b32 v{t1}, 4, v{l}")
    A(f"    v_and_b32 v{t2}, 6, v{t0}")
    A(f"    v_xor_b32 v{t2}, v{t1}, v{t2}")
    A(f"    v_lshlrev_b32 v{t2}, 4, v{t2}")
    A(f"    v_lshrrev_b32 v{t3}, 3, v{t0}")
    A(f"    v_lshlrev_b32 v{t3}, 11, v{t3}")
    A(f"    v_and_b32 v{t4}, 7, v{t0}")
    A(f"    v_lshl_add_u32 v{t3}, v{t4}, 7, v{t3}")
    A(f"    s_mul_i32 s96, s{hh}, s{br}")
    A(f"    s_mul_i32 s96, s96, 40960")
    A(f"    s_add_u32 s96, s96, {LDS_R5}")
    A(f"    v_add3_u32 v{vK[0]}, v{t3}, v{t2}, s96")
    A(f"    v_xor_b32 v{vK[1]}, 64, v{vK[0]}")
    A(f"    s_mul_i32 s{sT}, s{ii}, 6144")
    A(f"    s_add_u32 s{sT}, s{sT}, {LDS_R8}")
    A(f"    v_lshl_add_u32 v{t3}, v{t0}, 7, v{t2}")
    A(f"    v_add_u32 v{vX[0]}, s{sT}, v{t3}")
    A(f"    v_xor_b32 v{vX[1]}, 64, v{vX[0]}")
    A(f"    v_lshrrev_b32 v{t0}, 2, v{l}")
    A(f"    v_and_b32 v{t2}, 3, v{l}")
    A(f"    v_lshrrev_b32 v{t3}, 1, v{t2}")
    A(f"    v_and_b32 v{t4}, 6, v{t0}")
    A(f"    v_xor_b32 v{t3}, v{t3}, v{t4}")
    A(f"    v_lshlrev_b32 v{t3}, 4, v{t3}")
    A(f"    v_and_b32 v{t4}, 1, v{t2}")
    A(f"    v_lshl_add_u32 v{t3}, v{t4}, 3, v{t3}")
    A(f"    v_lshrrev_b32 v{t4}, 3, v{t0}")
    A(f"    v_lshlrev_b32 v{t4}, 11, v{t4}")
    A(f"    v_and_b32 v{t5}, 7, v{t0}")
    A(f"    v_lshl_add_u32 v{t4}, v{t5}, 7, v{t4}")
    A(f"    v_add3_u32 v{vV[0]}, v{t4}, v{t3}, s96")
    for p in range(1, 4):
        A(f"    v_xor_b32 v{vV[p]}, {32 * p}, v{vV[0]}")
    A(f"    v_lshlrev_b32 v{t4}, 5, v{w}")
    A(f"    v_xor_b32 v{t3}, v{t3}, v{t4}")
    A(f"    v_lshl_add_u32 v{t3}, v{t0}, 7, v{t3}")
    A(f"    v_add_u32 v{vWo}, {LDS_R8}, v{t3}")
    A(f"    v_and_b32 v{t3}, 3, v{t0}")
    A(f"    v_and_b32 v{t4}, 2, v{t3}")
    A(f"    v_and_b32 v{t5}, 1, v{t1}")
    A(f"    v_lshl_or_b32 v{t4}, v{t5}, 2, v{t4}")
    A(f"    v_xor_b32 v{t4}, v{t2}, v{t4}")
    A(f"    v_lshlrev_b32 v{t4}, 4, v{t4}")
    A(f"    v_lshl_add_u32 v{t4}, v{t3}, 7, v{t4}")
    A(f"    v_lshl_add_u32 v{t4}, v{t1}, 11, v{t4}")
    A(f"    v_add_u32 v{vW[0]}, s3, v{t4}")
    A(f"    v_xor_b32 v{vW[1]}, 64, v{vW[0]}")
    A(f"    v_lshlrev_b32 v{vO}, 4, v{l}")
    A(f"    s_mul_i32 s3, s{hh}, 24")
    A(f"    s_mul_i32 s{sT}, s{ii}, 3")
    A(f"    s_add_u32 s3, s3, s{sT}")
    A(f"    s_lshl_b32 s3, s3, 10")
    A(f"    v_add_u32 v{vOw}, s3, v{vO}")
    A(f"    s_mul_i32 s3, s{sJ}, 1179648")
    A(f"    s_add_u32 s3, s3, {3 * 294912}")
    for c in range(9):
        A(f"    s_add_u32 s{sColF + c}, s3, s{sCol + c}")
        A(f"    s_mul_i32 s{sWs + c}, s{sCol + c}, 384")
        A(f"    s_add_u32 s{sWs + c}, s{sWs + c}, s{sGrp}")
        A(f"    s_sub_u32 s{sCol + c}, s{sColF + c}, {4 * 294912}")
    A("    s_mov_b32 s91, 1")
    for i in range(216):
        A(f"    v_accvgpr_write_b32 a{i}, 0")
    return T


def stamp():
    if not CFG["STAMP"]:
        return []
    return [Op("s_memtime s[92:93]", "S"), Op("s_memrealtime s[100:101]", "S"), Op("s_waitcnt lgkmcnt(0)", "S"),
            Op("s_lshl_b64 exec, 1, s91", "S"), Op("v_mov_b32 v253, s92", "S"), Op("v_mov_b32 v254, s100", "S"),
            Op("s_mov_b64 exec, -1", "S"), Op("s_add_u32 s91, s91, 1", "S"), Op("s_nop 3", "NOP")]


def stamp_at(lst, mfs):
    if not CFG["STAMP"]:
        return lst
    out = []
    ids = {id(m) for m in mfs}
    for o in lst:
        if id(o) in ids:
            out += stamp()
        out.append(o)
    return out


def stamp_store():
    if not CFG["STAMP"]:
        return []
    return raw(["s_lshl_b32 s91, s2, 2", f"s_add_u32 s91, s91, s{sWave}", "s_lshl_b32 s91, s91, 8",
                f"s_add_u32 s91, s91, {100 << 20}", f"v_lshrrev_b32 v252, 2, v{vO}", "s_nop 1",
                f"buffer_store_dword v254, v252, {srd(SRD_WS)}, s91 offen",
                f"s_add_u32 s91, s91, {1 << 20}", "s_nop 0",
                f"buffer_store_dword v253, v252, {srd(SRD_WS)}, s91 offen", "s_mov_b64 exec, -1", "s_waitcnt vmcnt(0)"])


def raw(lines):
    return [Op(x.strip(), "S") for x in lines]


def slow_path():
    T = []
    A = T.append
    l4, ka, va = vT[6], vT[7], vT[8]
    kb = 144
    Sx = 176
    Px = 200
    Vx = 212
    nm = 216
    s0, s1 = 98, 99
    A("L_slow:")
    A("    s_waitcnt vmcnt(0) lgkmcnt(0)")
    A("    s_nop 7")
    A(f"    s_lshl_b32 s{s0}, s{sAdj}, 0")
    A(f"    s_add_u32 s{s0}, s{s0}, 131072")
    A(f"    s_sub_u32 s{s0}, s{sK}, s{s0}")
    A(f"    s_and_b32 s{s0}, s{s0}, 0xfffe0000")
    A(f"    v_lshrrev_b32 v{l4}, 4, v{vO}")
    A(f"    v_and_b32 v{ka}, 15, v{l4}")
    A(f"    v_lshrrev_b32 v{l4}, 4, v{l4}")
    A(f"    v_lshlrev_b32 v{va}, 1, v{ka}")
    A(f"    v_lshl_add_u32 v{va}, v{l4}, 10, v{va}")
    A(f"    v_lshlrev_b32 v{ka}, 8, v{ka}")
    A(f"    v_lshl_add_u32 v{ka}, v{l4}, 4, v{ka}")
    for q in range(3):
        A(f"    v_mov_b32 v{nm + q}, 0xff800000")

    def qk(use_m):
        for kt in range(2):
            for u in range(4):
                A(f"    buffer_load_dwordx4 v[{kb + (kt * 4 + u) * 4}:{kb + (kt * 4 + u) * 4 + 3}], v{ka}, {srd(SRD_KR)}, s{s1} offen offset:{u * 64}")
            if kt == 0:
                A(f"    s_add_u32 s{s1}, s{s1}, 4096")
        A(f"    s_sub_u32 s{s1}, s{s1}, 4096")
        A("    s_waitcnt vmcnt(0)")
        for q in range(3):
            if use_m:
                for r in range(4):
                    A(f"    v_mov_b32 v{220 + r}, v{nm + q}")
                A("    s_nop 1")
            for kt in range(2):
                for u in range(4):
                    d = Sx + (kt * 3 + q) * 4
                    c = f"v[{d}:{d + 3}]" if u else ("v[220:223]" if use_m else "0")
                    f = Qf(u, q)[1]
                    A(f"    v_mfma_f32_16x16x32_bf16 v[{d}:{d + 3}], v[{kb + (kt * 4 + u) * 4}:{kb + (kt * 4 + u) * 4 + 3}], v[{f}:{f + 3}], {c}")
            A("    s_nop 7")
            A("    s_nop 7")

    A(f"    s_mov_b32 s{s1}, s{s0}")
    A(f"    s_mov_b32 s{sT}, 16")
    A("L_slow1:")
    qk(False)
    for q in range(3):
        for kt in range(2):
            d = Sx + (kt * 3 + q) * 4
            A(f"    v_max3_f32 v{nm + q}, v{nm + q}, v{d}, v{d + 1}")
            A(f"    v_max3_f32 v{nm + q}, v{nm + q}, v{d + 2}, v{d + 3}")
    A(f"    s_add_u32 s{s1}, s{s1}, 8192")
    A(f"    s_sub_u32 s{sT}, s{sT}, 1")
    A(f"    s_cmp_lg_u32 s{sT}, 0")
    A("    s_cbranch_scc1 L_slow1")
    for q in range(3):
        for sw in ("32", "16"):
            A(f"    v_mov_b32 v220, v{nm + q}")
            A("    s_nop 1")
            A(f"    v_permlane{sw}_swap_b32 v220, v{nm + q}")
            A("    s_nop 1")
            A(f"    v_max_f32 v{nm + q}, v{nm + q}, v220")
        A(f"    v_sub_f32 v{nm + q}, 0, v{nm + q}")
        A(f"    v_mov_b32 v{Lr(q)}, 0")
    for i in range(96):
        A(f"    v_mov_b32 v{i}, 0")
    A(f"    s_mov_b32 s{s1}, s{s0}")
    A(f"    s_mov_b32 s{sT}, 16")
    A("L_slow2:")
    qk(True)
    for q in range(3):
        for kt in range(2):
            d = Sx + (kt * 3 + q) * 4
            for r in range(4):
                A(f"    v_exp_f32 v{d + r}, v{d + r}")
            for r in range(4):
                A(f"    v_add_f32 v{Lr(q)}, v{Lr(q)}, v{d + r}")
            A(f"    v_cvt_pk_bf16_f32 v{Px + 4 * q + 2 * kt}, v{d}, v{d + 1}")
            A(f"    v_cvt_pk_bf16_f32 v{Px + 4 * q + 2 * kt + 1}, v{d + 2}, v{d + 3}")
    for dt in range(8):
        for sec in range(2):
            if sec == 1:
                A(f"    s_add_u32 s{s1}, s{s1}, 4096")
            for r in range(4):
                hi = "_hi" if r & 1 else ""
                A(f"    buffer_load_short_d16{hi} v{Vx + 2 * sec + (r >> 1)}, v{va}, {srd(SRD_VR)}, s{s1} offen offset:{r * 256 + dt * 32}")
                if not (r & 1):
                    A("    s_waitcnt vmcnt(0)")
        A(f"    s_sub_u32 s{s1}, s{s1}, 4096")
        A("    s_waitcnt vmcnt(0)")
        for q in range(3):
            d = Oacc(dt, q)[1]
            A(f"    v_mfma_f32_16x16x32_bf16 v[{d}:{d + 3}], v[{Vx}:{Vx + 3}], v[{Px + 4 * q}:{Px + 4 * q + 3}], v[{d}:{d + 3}]")
        A("    s_nop 7")
    A(f"    s_add_u32 s{s1}, s{s1}, 8192")
    A(f"    s_sub_u32 s{sT}, s{sT}, 1")
    A(f"    s_cmp_lg_u32 s{sT}, 0")
    A("    s_cbranch_scc1 L_slow2")
    A("    s_nop 7")
    A("    s_nop 7")
    A(f"    s_cmp_eq_u32 s{sRet}, 0")
    A("    s_cbranch_scc1 L_ret0")
    A(f"    s_cmp_eq_u32 s{sRet}, 1")
    A("    s_cbranch_scc1 L_ret1")
    A("    s_branch L_ret2")
    return T


def reduce_kernel():
    return f"""
.globl reduce_kernel
.p2align 8
.type reduce_kernel,@function
reduce_kernel:
    s_cmp_ge_u32 s2, 1728
    s_cbranch_scc1 L_rend
    s_load_dwordx2 s[4:5], s[0:1], 80
    s_load_dwordx2 s[8:9], s[0:1], 96
    ; wg -> (3 pieces of 1 KiB... ) each wave handles one 1 KiB piece: piece id = wg*4 + wave
    v_lshrrev_b32 v1, 6, v0
    s_nop 0
    v_readfirstlane_b32 s12, v1
    s_lshl_b32 s13, s2, 2
    s_add_u32 s13, s13, s12            ; piece = ((grp*9+cb)*4 + w)*3 + i
    s_mov_b32 s14, 0x55555556
    s_mul_hi_u32 s15, s13, s14         ; t = piece/3 = (grp*9+cb)*4 + w
    s_mul_i32 s16, s15, 3
    s_sub_u32 s16, s13, s16            ; i
    s_and_b32 s17, s15, 3              ; w
    s_lshr_b32 s18, s15, 2             ; grp*9+cb
    s_mov_b32 s14, 0x1c71c71d
    s_mul_hi_u32 s19, s18, s14         ; grp
    s_mul_i32 s20, s19, 9
    s_sub_u32 s20, s18, s20            ; cb
    s_mul_i32 s21, s18, 49152
    s_mul_i32 s22, s17, 3072
    s_add_u32 s21, s21, s22
    s_lshl_b32 s22, s16, 10
    s_add_u32 s21, s21, s22
    v_and_b32 v2, 63, v0
    v_lshlrev_b32 v3, 4, v2
    s_waitcnt lgkmcnt(0)
    s_mov_b32 s6, 7077888
    s_mov_b32 s7, 0x20000
    s_mov_b32 s10, 0x20000000
    s_mov_b32 s11, 0x20000
    s_add_u32 s22, s21, 12288
    s_add_u32 s23, s21, 24576
    s_add_u32 s24, s21, 36864
    buffer_load_dwordx4 v[4:7], v3, s[8:11], s21 offen
    buffer_load_dwordx4 v[8:11], v3, s[8:11], s22 offen
    buffer_load_dwordx4 v[12:15], v3, s[8:11], s23 offen
    buffer_load_dwordx4 v[16:19], v3, s[8:11], s24 offen
    ; out address: row = b*96 + 32*i + c (+16), col bytes = br*1152 + cb*128 + w*32 + g*8
    s_and_b32 s25, s19, 31
    s_lshr_b32 s26, s19, 5
    s_mul_i32 s25, s25, 96
    s_lshl_b32 s27, s16, 5
    s_add_u32 s25, s25, s27
    s_mul_i32 s25, s25, 2304
    s_mul_i32 s26, s26, 1152
    s_add_u32 s25, s25, s26
    s_lshl_b32 s26, s20, 7
    s_add_u32 s25, s25, s26
    s_lshl_b32 s26, s17, 5
    s_add_u32 s25, s25, s26
    s_add_u32 s26, s25, 36864
    v_and_b32 v20, 15, v2
    v_mul_u32_u24 v20, 2304, v20
    v_lshrrev_b32 v21, 4, v2
    v_lshl_add_u32 v20, v21, 3, v20
    s_waitcnt vmcnt(0)
""" + "".join(f"""    v_lshlrev_b32 v22, 16, v{4 + k}
    v_and_b32 v23, 0xffff0000, v{4 + k}
""" + "".join(f"""    v_lshlrev_b32 v24, 16, v{4 + 4 * p + k}
    v_and_b32 v25, 0xffff0000, v{4 + 4 * p + k}
    v_add_f32 v22, v22, v24
    v_add_f32 v23, v23, v25
""" for p in range(1, 4)) + f"""    v_cvt_pk_bf16_f32 v{28 + k}, v22, v23
""" for k in range(4)) + f"""    buffer_store_dwordx2 v[28:29], v20, s[4:7], s25 offen
    buffer_store_dwordx2 v[30:31], v20, s[4:7], s26 offen
    s_waitcnt vmcnt(0)
L_rend:
    s_endpgm
"""


def main(outpath):
    inker = CFG["INKERNEL"]
    p1, ctx = prologue()
    p2 = prologue2(ctx)
    p3 = prologue3(ctx)
    pro_dma = []
    for n in range(2):
        pro_dma += unit_dma_ops(n) + x_dma_ops(n)
    if CFG["TOUCH"]:
        pro_dma += touch_multi(vTq, SRD_WQ, sTq, 9 * 8192) + [sop(f"s_add_u32 s{sTq}, s{sTq}, 512")] + (touch_x() if CFG["TX0"] else [])
    pro_dma += unit_dma_ops(2) + unit_dma_ops(3)
    pro_dma = straight(pro_dma)
    pre = []
    for dt in range(CFG["PEND"]):
        pre += w_reads(0, dt, POOL[dt])
    pre += [x_read(k, q) for k in range(2) for q in range(3)]
    pro_b = straight([wait(["U0", "X0"]), Op("s_barrier", "BAR")] + pre)

    first = build_round(True, False)
    first.schedule(pending_ds=preread_dummies())
    body = build_round(False, False)
    body.schedule(pending_ds=preread_dummies())
    cut = body.L.B[46]
    ci = body.out.index(body.mf[cut])
    prefix, tailn = body.out[:ci], body.out[ci:]
    bodyf = build_round(False, True)
    bodyf.schedule(prefix=prefix, cut=cut, pending_ds=preread_dummies())
    tailf = bodyf.out[len(prefix):]
    fin = build_final()
    fin.schedule()
    if inker:
        raise NotImplementedError
    ftail = final_tail_simple()

    chk0 = [Op(f"s_mov_b32 s{sRound}, 1", "S"), Op("s_cbranch_vccnz L_slow0", "BR", ["vcc"]), Op("L_ret0:", "LABEL"), Op("L_loop:", "LABEL")]
    cutops = [Op(f"s_cmp_eq_u32 s{sRound}, 3", "S"), Op("s_cbranch_scc1 L_tailf", "BR")]
    chk1 = [Op(f"s_add_u32 s{sRound}, s{sRound}, 1", "S"), Op("s_cbranch_vccnz L_slow1e", "BR", ["vcc"]),
            Op("L_ret1:", "LABEL"), Op("s_branch L_loop", "BR")]
    chk2 = [Op("s_cbranch_vccnz L_slow2e", "BR", ["vcc"]), Op("L_ret2:", "LABEL")]
    tl = [Op("L_tailf:", "LABEL")]
    dyn = [pro_dma, raw(p3), pro_b, first.out, chk0]
    for r in range(2):
        dyn += [prefix, cutops, tailn, chk1]
    dyn += [prefix, cutops, tl, tailf, chk2, fin.pre, fin.out, ftail]
    resolve_waits(dyn)
    expect = {f"U{n}": 4 for n in range(50)}
    expect.update({f"X{i}": 3 for i in range(9)})
    expect.update({f"WO{j}": 1 for j in range(72)})
    expect.update({f"F{j}": 1 for j in range(72)})
    errs = check_dyn(dyn, expect) + check_lds(dyn)
    for e in errs[:40]:
        print("ERR", e, file=sys.stderr)
    if errs:
        raise SystemExit(f"{len(errs)} errors")
    for nm, r, lst in (("first", first, first.out), ("body", body, body.out), ("bodyf", bodyf, bodyf.out), ("final", fin, fin.out)):
        print(f"{nm}: mfma {len(r.mf)} est {r.estimate()} ideal {16 * len(r.mf)} stats {r.stats} instrs {len(lst)}", file=sys.stderr)

    if CFG["STAMP"]:
        def marks(r, secs):
            return [r.mf[r.L.start[n]] for n in secs]
        if CFG["STAMP"] == 1:
            first.out = stamp_at(first.out, marks(first, [0, 9, 18, 19, 34]))
            prefix = stamp_at(prefix, marks(body, [0, 9, 18, 19, 34]))
        else:
            prefix = raw(["s_mov_b32 s91, 1"]) + stamp_at(prefix, marks(body, list(range(46))))
        fin.pre = stamp() + fin.pre
        fin.out = stamp_at(fin.out, [fin.mf[0], fin.mf[216]])
        ftail = stamp() + ftail
    def abl(lst):
        a = CFG["ABL"]
        out = []
        for o in lst:
            if "b" in a and o.kind == "BAR": continue
            if "d" in a and o.kind == "DMA": continue
            if "w" in a and o.kind == "WAIT": continue
            if "l" in a and o.kind == "WAIT" and o.nvm is None: continue
            if "v" in a and o.kind in ("V4", "V8"): continue
            if "e" in a and o.kind == "V8": continue
            if "r" in a and o.kind in ("DS", "DSW"): continue
            if "s" in a and o.kind == "S" and o.text.startswith("s_add") and "s91" not in o.text: continue
            out.append(o)
        return out
    if CFG["ABL"]:
        first.out, prefix, tailn, tailf, fin.out = map(abl, (first.out, prefix, tailn, tailf, fin.out))
    kname = NAME + "_kernel"
    hdr = [f"; fused Q-proj + attention + out-proj, generated by gen/gen.py"]
    if inker:
        hdr.append("; @launch grid=(256,1,1) block=(256,1,1) lds=163840")
    else:
        hdr.append(f"; @launch kernel={kname} grid=(256,1,1) block=(256,1,1) lds=163840")
        hdr.append(f"; @launch kernel=reduce_kernel grid=(1728,1,1) block=(256,1,1) lds=0")
    S = "\n".join(hdr) + f"""
.amdgcn_target "amdgcn-amd-amdhsa--gfx950"
.text
.globl {kname}
.p2align 8
.type {kname},@function
{kname}:
"""
    S += "\n".join(p1) + "\n" + "\n".join(p2) + "\n" + render(pro_dma) + "\n" + "\n".join(p3) + "\n" + render(pro_b) + "\n"
    S += render(first.out) + "\n" + render(chk0) + "\n" + render(prefix) + "\n" + render(cutops) + "\n"
    S += render(tailn) + "\n" + render(chk1) + "\n" + render(tl) + "\n" + render(tailf) + "\n" + render(chk2) + "\n"
    S += render(fin.pre) + "\n" + render(fin.out) + "\n" + render(ftail) + "\n"
    for k, lab in enumerate(("L_slow0", "L_slow1e", "L_slow2e")):
        S += f"{lab}:\n    s_mov_b32 s{sRet}, {k}\n    s_branch L_slow\n"
    S += "\n".join(slow_path()) + "\nL_end:\n    s_endpgm\n"
    if not inker:
        S += reduce_kernel()
    S += f""".section .rodata,"a"
.p2align 6
.amdhsa_kernel {kname}
  .amdhsa_next_free_vgpr 512
  .amdhsa_next_free_sgpr 102
  .amdhsa_accum_offset 256
  .amdhsa_group_segment_fixed_size 0
  .amdhsa_kernarg_size 104
  .amdhsa_user_sgpr_count 2
  .amdhsa_user_sgpr_kernarg_segment_ptr 1
  .amdhsa_system_sgpr_workgroup_id_x 1
  .amdhsa_float_denorm_mode_32 3
.end_amdhsa_kernel
"""
    if not inker:
        S += """.p2align 6
.amdhsa_kernel reduce_kernel
  .amdhsa_next_free_vgpr 32
  .amdhsa_next_free_sgpr 32
  .amdhsa_accum_offset 32
  .amdhsa_group_segment_fixed_size 0
  .amdhsa_kernarg_size 104
  .amdhsa_user_sgpr_count 2
  .amdhsa_user_sgpr_kernarg_segment_ptr 1
  .amdhsa_system_sgpr_workgroup_id_x 1
  .amdhsa_float_denorm_mode_32 3
.end_amdhsa_kernel
"""
    open(outpath, "w").write(S)


if __name__ == "__main__":
    main(sys.argv[1] if len(sys.argv) > 1 else "out.s")
```
